```python
import torch

def _softmax(x, axis=-1):
    return torch.softmax(x, dim=axis)
def _gelu(x):
    return torch.nn.functional.gelu(x, approximate="tanh")
def _silu(x):
    return torch.nn.functional.silu(x)
def _sigmoid(x):
    return torch.sigmoid(x)
def _layernorm(x, axis=-1, eps=1e-5):
    m = x.mean(dim=axis, keepdim=True)
    v = x.var(dim=axis, keepdim=True, unbiased=False)
    return (x - m) / torch.sqrt(v + eps)
def _scatter_add(tgt, idx, src, axis=0):
    return tgt.clone().index_add_(axis, idx, src)
def _segment_sum(src, seg, n):
    out = torch.zeros((n,) + src.shape[1:], dtype=src.dtype)
    return out.index_add_(0, seg, src)
def _pad(x, pw):
    flat = tuple(v for pair in reversed(pw) for v in pair)
    return torch.nn.functional.pad(x, flat)

kernel_name = 'standalone__mha_block__prompt'

def setup_inputs():

    _w = (lambda a: (lambda t: t.to(torch.bfloat16) if t.is_floating_point() else t)(torch.as_tensor(a)))
    B, S, D, H = 1, 2048, 1024, 32
    return {
        "x": _w((lambda *s: torch.randn(*s, dtype=torch.bfloat16) * 0.2)(B, S, D)),
        "wqkv": _w((lambda *s: torch.randn(*s, dtype=torch.bfloat16) * 0.2)(D, 3 * D)),
        "wo": _w((lambda *s: torch.randn(*s, dtype=torch.bfloat16) * 0.05)(D, D)),
    }

def reference(x, wqkv, wo):
    B, S, D = x.shape
    H = 32
    Dh = D // H
    qkv = (lambda x, *d: x.permute(*d))((x @ wqkv).reshape(B, S, 3, H, Dh), 2, 0, 3, 1, 4)
    q, k, v = qkv[0], qkv[1], qkv[2]
    scores = torch.einsum("bhqd,bhkd->bhqk", q, k) * (Dh ** -0.5)
    p = _softmax(scores, axis=-1)
    o = torch.einsum("bhqk,bhkd->bhqd", p, v)
    return (lambda x, *d: x.permute(*d))(o, 0, 2, 1, 3).reshape(B, S, D) @ wo
```

```python
import struct

def f32hex(x):
    return '0x%08x' % struct.unpack('<I', struct.pack('<f', x))[0]

class Asm:
    def __init__(self):
        self.lines = []
    def __call__(self, s, *a):
        for l in s.split('\n'):
            l = l.strip()
            if l:
                self.lines.append('    ' + l)
    def label(self, l):
        self.lines.append(l + ':')
    def c(self, s):
        self.lines.append('    ; ' + s)
    def raw(self, s):
        self.lines.append(s)
    def text(self):
        return '\n'.join(self.lines) + '\n'

def vr(b, n=1):
    return f'v{b}' if n == 1 else f'v[{b}:{b+n-1}]'
def sr(b, n=1):
    return f's{b}' if n == 1 else f's[{b}:{b+n-1}]'

def interleave(primary, secondary, positions):
    out = []
    j = 0
    for i, p in enumerate(primary):
        while j < len(secondary) and positions[j] <= i:
            out.append(secondary[j]); j += 1
        out.append(p)
    while j < len(secondary):
        out.append(secondary[j]); j += 1
    return out

def kernel_header(a, name):
    a.raw(f'.globl {name}')
    a.raw('.p2align 8')
    a.raw(f'.type {name},@function')
    a.raw(f'{name}:')

def kernel_desc(name, vgpr, sgpr=96, accum=None):
    if accum is None:
        accum = (vgpr + 3) // 4 * 4
    return f""".amdhsa_kernel {name}
  .amdhsa_next_free_vgpr {vgpr}
  .amdhsa_next_free_sgpr {sgpr}
  .amdhsa_accum_offset {accum}
  .amdhsa_group_segment_fixed_size 0
  .amdhsa_kernarg_size 48
  .amdhsa_user_sgpr_count 2
  .amdhsa_user_sgpr_kernarg_segment_ptr 1
  .amdhsa_system_sgpr_workgroup_id_x 1
.end_amdhsa_kernel
"""
```

```python
from asmlib import *
from k_qkv import WS_QF, WS_KV, WS_OF, WS_END

ASLOT = 32768
ANSLOT = 4
ATTN_LDS = ASLOT * ANSLOT
LTHR = 2.0 ** 24

def gen_attn(name='mha_attn_kernel'):
    a = Asm()
    kernel_header(a, name)
    QA, QB = 16, 24
    NMA, NMB = 32, 48
    SA, SB = 64, 80
    OA, OB = 96, 112
    PA, PB = 128, 136
    LA, LB = 144, 148
    ONES, IDX = 152, 156
    KF = [160, 168]
    VF = [176, 184]
    VLANE16, VLDS0, VLDS = 8, 9, 10
    M32 = lambda d, A, B, C: f'v_mfma_f32_32x32x16_bf16 {vr(d,16)}, {vr(A,4)}, {vr(B,4)}, {C}'
    SM = lambda d, B: f'v_smfmac_f32_16x16x64_bf16 {vr(d,4)}, {vr(ONES,4)}, {vr(B,8)}, v{IDX}'
    a(f"""
    s_cmp_ge_u32 s2, 256
    s_cbranch_scc1 {name}_end
    s_load_dwordx2 s[8:9], s[0:1], 40
    v_lshrrev_b32 v1, 6, v0
    v_and_b32 v2, 63, v0
    s_and_b32 s25, s2, 7
    v_readfirstlane_b32 s24, v1
    s_lshl_b32 s25, s25, 2
    s_lshr_b32 s26, s2, 3
    s_and_b32 s27, s26, 3
    s_add_u32 s25, s25, s27
    s_lshr_b32 s26, s26, 2
    s_and_b32 s27, s24, 3
    s_lshr_b32 s28, s24, 2
    v_lshlrev_b32 v{VLANE16}, 4, v2
    """)
    a.c('s25 = head, s26 = qb, s27 = qi, s28 = kh')
    a(f"""
    s_waitcnt lgkmcnt(0)
    s_lshl_b32 s29, s25, 18
    s_add_u32 s29, s29, {WS_KV}
    s_add_u32 s12, s8, s29
    s_addc_u32 s13, s9, 0
    s_mov_b32 s14, {64*4096}
    s_mov_b32 s15, 0x20000
    s_mov_b32 s16, s8
    s_mov_b32 s17, s9
    s_mov_b32 s18, {WS_END}
    s_mov_b32 s19, 0x20000
    """)
    a.c('s[12:15] = KV of head, s[16:19] = ws')
    a(f"""
    s_lshl_b32 s30, s28, 17
    s_lshl_b32 s29, s27, 12
    s_add_u32 s30, s30, s29
    s_lshl_b32 s31, s28, 14
    s_add_u32 s31, s31, s29
    s_mov_b32 s32, 0
    """)
    def dma_issue():
        a('s_add_u32 m0, s31, s32')
        a('s_nop 0')
        for n in range(4):
            a(f'buffer_load_dwordx4 v{VLANE16}, s[12:15], s30 offen offset:{n*1024} lds')
        a('s_add_u32 s30, s30, 16384')
        a(f's_add_u32 s32, s32, {ASLOT}')
        a(f's_and_b32 s32, s32, {ASLOT*ANSLOT-1}')
    a(f"""
    s_lshl_b32 s33, s25, 6
    s_lshl_b32 s34, s26, 3
    s_add_u32 s33, s33, s34
    s_lshl_b32 s34, s27, 1
    s_add_u32 s33, s33, s34
    s_lshl_b32 s34, s33, 11
    s_add_u32 s35, s34, 2048
    buffer_load_dwordx4 {vr(QA,4)}, v{VLANE16}, s[16:19], s34 offen
    buffer_load_dwordx4 {vr(QA+4,4)}, v{VLANE16}, s[16:19], s34 offen offset:1024
    buffer_load_dwordx4 {vr(QB,4)}, v{VLANE16}, s[16:19], s35 offen
    buffer_load_dwordx4 {vr(QB+4,4)}, v{VLANE16}, s[16:19], s35 offen offset:1024
    buffer_load_dwordx4 {vr(KF[0],4)}, v{VLANE16}, s[12:15], 0 offen
    buffer_load_dwordx4 {vr(KF[0]+4,4)}, v{VLANE16}, s[12:15], 0 offen offset:1024
    """)
    for _ in range(3):
        dma_issue()
    a(f"""
    v_and_b32 v3, 15, v2
    v_and_b32 v4, 3, v3
    v_cmp_gt_u32 vcc, 2, v4
    v_mov_b32 v5, 0x3f803f80
    v_lshrrev_b32 v6, 2, v3
    v_cndmask_b32 v5, 0, v5, vcc
    v_and_b32 v6, 1, v6
    v_cmp_eq_u32 vcc, 0, v6
    v_and_b32 v7, 1, v3
    v_mov_b32 v4, 0x44444444
    v_cndmask_b32 v{ONES}, 0, v5, vcc
    v_cndmask_b32 v{ONES+1}, 0, v5, vcc
    v_cndmask_b32 v{ONES+2}, v5, 0, vcc
    v_cndmask_b32 v{ONES+3}, v5, 0, vcc
    v_cmp_eq_u32 vcc, 0, v7
    v_mov_b32 v6, 0xeeeeeeee
    v_lshlrev_b32 v3, 4, v2
    v_cndmask_b32 v{IDX}, v6, v4, vcc
    s_lshl_b32 s36, s28, 14
    v_add_u32 v{VLDS0}, s36, v3
    """)
    for r in list(range(OA, OA + 32)) + list(range(PB, PB + 8)) + list(range(LA, LA + 8)) + list(range(VF[1], VF[1] + 8)):
        a(f'v_mov_b32 v{r}, 0')
    a('s_waitcnt vmcnt(12)')
    a(M32(SA, KF[0], QA, '0'))
    a(M32(SB, KF[0], QB, '0'))
    a(M32(SA, KF[0] + 4, QA + 4, vr(SA, 16)))
    a(M32(SB, KF[0] + 4, QB + 4, vr(SB, 16)))
    a('s_nop 15')
    def rowmax(S, dst, tmp):
        a(f'v_max3_f32 v{dst}, v{S}, v{S+1}, v{S+2}')
        a(f'v_max3_f32 v{tmp}, v{S+3}, v{S+4}, v{S+5}')
        a(f'v_max3_f32 v{dst}, v{dst}, v{S+6}, v{S+7}')
        a(f'v_max3_f32 v{tmp}, v{tmp}, v{S+8}, v{S+9}')
        a(f'v_max3_f32 v{dst}, v{dst}, v{S+10}, v{S+11}')
        a(f'v_max3_f32 v{tmp}, v{tmp}, v{S+12}, v{S+13}')
        a(f'v_max3_f32 v{dst}, v{dst}, v{S+14}, v{S+15}')
        a(f'v_max_f32 v{dst}, v{dst}, v{tmp}')
        a(f'v_mov_b32 v{tmp}, v{dst}')
        a('s_nop 1')
        a(f'v_permlane32_swap_b32 v{dst}, v{tmp}')
        a('s_nop 1')
        a(f'v_max_f32 v{dst}, v{dst}, v{tmp}')
    rowmax(SA, 3, 4)
    rowmax(SB, 5, 6)
    for r in range(16):
        a(f'v_sub_f32 v{NMA+r}, 0, v3')
        a(f'v_sub_f32 v{NMB+r}, 0, v5')
    a(f"""
    s_waitcnt vmcnt(8)
    s_barrier
    v_mov_b32 v{VLDS}, v{VLDS0}
    ds_read_b128 {vr(KF[0],4)}, v{VLDS} offset:0
    ds_read_b128 {vr(KF[0]+4,4)}, v{VLDS} offset:1024
    s_mov_b32 s37, 0
    s_mov_b32 s38, 0
    s_waitcnt lgkmcnt(0)
    """)
    a(M32(SA, KF[0], QA, vr(NMA, 16)))
    a(M32(SA, KF[0] + 4, QA + 4, vr(SA, 16)))
    a('s_nop 7')
    VNEXT = 11
    a.raw('.p2align 6')
    a.label(f'{name}_loop')
    a('s_waitcnt vmcnt(4)')
    a('s_barrier')
    dma_issue()
    a(f's_add_u32 s39, s38, {ASLOT}')
    a(f's_and_b32 s39, s39, {ASLOT*ANSLOT-1}')
    a(f'v_add_u32 v{VNEXT}, s39, v{VLDS0}')
    def softmax(S, P):
        v = []
        for i in range(8):
            v.append(f'v_exp_f32 v{S+2*i}, v{S+2*i}')
            v.append(f'v_exp_f32 v{S+2*i+1}, v{S+2*i+1}')
            if i >= 1:
                v.append(f'v_cvt_pk_bf16_f32 v{P+i-1}, v{S+2*i-2}, v{S+2*i-1}')
        v.append(f'v_cvt_pk_bf16_f32 v{P+7}, v{S+14}, v{S+15}')
        return v
    for t in range(4):
        kc, kn = KF[t & 1], KF[(t + 1) & 1]
        vc, vp = VF[t & 1], VF[(t + 1) & 1]
        if t < 3:
            rk = [f'ds_read_b128 {vr(kn,4)}, v{VLDS} offset:{(t+1)*4096}',
                  f'ds_read_b128 {vr(kn+4,4)}, v{VLDS} offset:{(t+1)*4096+1024}']
        else:
            rk = [f'ds_read_b128 {vr(kn,4)}, v{VNEXT} offset:0',
                  f'ds_read_b128 {vr(kn+4,4)}, v{VNEXT} offset:1024']
        rv = [f'ds_read_b128 {vr(vc,4)}, v{VLDS} offset:{t*4096+2048}',
              f'ds_read_b128 {vr(vc+4,4)}, v{VLDS} offset:{t*4096+3072}']
        sm = softmax(SA, PA)
        mf = [M32(SB, kc, QB, vr(NMB, 16)), rv[0], rv[1], M32(SB, kc + 4, QB + 4, vr(SB, 16)), rk[0], rk[1],
              M32(OB, vp, PB, vr(OB, 16)), M32(OB, vp + 4, PB + 4, vr(OB, 16)), SM(LB, PB)]
        seq = interleave(sm, mf, [0, 1, 2, 5, 6, 7, 10, 15, 20])
        a.c(f'X({t})')
        for l in seq: a(l)
        sm = softmax(SB, PB)
        mf = [M32(SA, kn, QA, vr(NMA, 16)), M32(SA, kn + 4, QA + 4, vr(SA, 16)),
              M32(OA, vc, PA, vr(OA, 16)), M32(OA, vc + 4, PA + 4, vr(OA, 16)), SM(LA, PA)]
        seq = ['s_waitcnt lgkmcnt(0)'] + interleave(sm, mf, [0, 5, 10, 15, 20])
        a.c(f'Y({t})')
        for l in seq: a(l)
    a(f"""
    v_mov_b32 v{VLDS}, v{VNEXT}
    s_mov_b32 s38, s39
    s_add_u32 s37, s37, 1
    s_cmp_lt_u32 s37, 8
    s_cbranch_scc1 {name}_loop
    """)
    a(M32(OB, VF[1], PB, vr(OB, 16)))
    a(M32(OB, VF[1] + 4, PB + 4, vr(OB, 16)))
    a(SM(LB, PB))
    a('s_waitcnt vmcnt(0)')
    a('s_barrier')
    a('s_nop 7')
    a(f"""
    v_add_f32 v{LA}, v{LA}, v{LA+1}
    v_add_f32 v{LB}, v{LB}, v{LB+1}
    s_mul_i32 s40, s24, 4352
    v_add_u32 v3, s40, v{VLANE16}
    s_xor_b32 s41, s24, 4
    s_mul_i32 s41, s41, 4352
    v_add_u32 v4, s41, v{VLANE16}
    v_lshrrev_b32 v5, 2, v{VLANE16}
    v_add_u32 v6, s41, v5
    v_add_u32 v5, s40, v5
    s_cmp_eq_u32 s28, 0
    s_cbranch_scc1 {name}_k0
    """)
    for r in range(4):
        a(f'ds_write_b128 v3, {vr(OA+4*r,4)} offset:{r*1024}')
    a(f'ds_write_b32 v5, v{LA} offset:4096')
    a('s_waitcnt lgkmcnt(0)')
    for r in range(16):
        a(f'v_mov_b32 v{OA+r}, v{OB+r}')
    a(f'v_mov_b32 v{LA}, v{LB}')
    for r in range(8):
        a(f'v_mov_b32 v{QA+r}, v{QB+r}')
    a('s_add_u32 s33, s33, 1')
    a(f's_branch {name}_mrg')
    a.label(f'{name}_k0')
    for r in range(4):
        a(f'ds_write_b128 v3, {vr(OB+4*r,4)} offset:{r*1024}')
    a(f'ds_write_b32 v5, v{LB} offset:4096')
    a('s_waitcnt lgkmcnt(0)')
    a.label(f'{name}_mrg')
    a('s_barrier')
    for r in range(4):
        a(f'ds_read_b128 {vr(SA+4*r,4)}, v4 offset:{r*1024}')
    a(f'ds_read_b32 v7, v6 offset:4096')
    a('s_waitcnt lgkmcnt(0)')
    for r in range(16):
        a(f'v_add_f32 v{OA+r}, v{OA+r}, v{SA+r}')
    a(f'v_add_f32 v{LA}, v{LA}, v7')
    a(f"""
    s_mov_b32 s42, {f32hex(LTHR)}
    s_mov_b32 s43, {f32hex(2.0**120)}
    v_max3_f32 v3, |v{OA}|, |v{OA+1}|, |v{OA+2}|
    """)
    for r in range(3, 15, 2):
        a(f'v_max3_f32 v3, v3, |v{OA+r}|, |v{OA+r+1}|')
    a(f"""
    v_max_f32 v3, v3, |v{OA+15}|
    v_cmp_nle_f32 vcc, v{LA}, s42
    v_cmp_nle_f32 s[44:45], v3, s43
    s_nop 3
    s_or_b64 s[44:45], vcc, s[44:45]
    s_cmp_lg_u64 s[44:45], 0
    s_cbranch_scc1 {name}_slow
    """)
    a.label(f'{name}_fin')
    a(f"""
    v_rcp_f32 v3, v{LA}
    s_and_b32 s40, s33, 63
    s_lshl_b32 s40, s40, 5
    s_add_u32 s40, s40, s25
    s_lshl_b32 s40, s40, 11
    s_add_u32 s40, s40, {WS_OF}
    """)
    for r in range(16):
        a(f'v_mul_f32 v{OA+r}, v{OA+r}, v3')
    for r in range(8):
        a(f'v_cvt_pk_bf16_f32 v{PA+r}, v{OA+2*r}, v{OA+2*r+1}')
    a(f'buffer_store_dwordx4 {vr(PA,4)}, v{VLANE16}, s[16:19], s40 offen')
    a(f'buffer_store_dwordx4 {vr(PA+4,4)}, v{VLANE16}, s[16:19], s40 offen offset:1024')
    a('s_waitcnt vmcnt(0)')
    a('s_endpgm')
    a.label(f'{name}_slow')
    a(f'v_mov_b32 v3, {f32hex(-3.0e38)}')
    a('s_mov_b32 s40, 0')
    a.label(f'{name}_s1')
    a(f"""
    buffer_load_dwordx4 {vr(KF[0],4)}, v{VLANE16}, s[12:15], s40 offen
    buffer_load_dwordx4 {vr(KF[0]+4,4)}, v{VLANE16}, s[12:15], s40 offen offset:1024
    s_waitcnt vmcnt(0)
    """)
    a(M32(SA, KF[0], QA, '0'))
    a(M32(SA, KF[0] + 4, QA + 4, vr(SA, 16)))
    a('s_nop 15')
    for r in range(0, 16, 2):
        a(f'v_max3_f32 v3, v3, v{SA+r}, v{SA+r+1}')
    a(f"""
    s_add_u32 s40, s40, 4096
    s_cmp_lt_u32 s40, {64*4096}
    s_cbranch_scc1 {name}_s1
    v_mov_b32 v4, v3
    s_nop 1
    v_permlane32_swap_b32 v3, v4
    s_nop 1
    v_max_f32 v3, v3, v4
    """)
    for r in range(16):
        a(f'v_sub_f32 v{NMA+r}, 0, v3')
        a(f'v_mov_b32 v{OA+r}, 0')
    for r in range(4):
        a(f'v_mov_b32 v{LA+r}, 0')
    a('s_mov_b32 s40, 0')
    a.label(f'{name}_s2')
    a(f"""
    buffer_load_dwordx4 {vr(KF[0],4)}, v{VLANE16}, s[12:15], s40 offen
    buffer_load_dwordx4 {vr(KF[0]+4,4)}, v{VLANE16}, s[12:15], s40 offen offset:1024
    buffer_load_dwordx4 {vr(VF[0],4)}, v{VLANE16}, s[12:15], s40 offen offset:2048
    buffer_load_dwordx4 {vr(VF[0]+4,4)}, v{VLANE16}, s[12:15], s40 offen offset:3072
    s_waitcnt vmcnt(0)
    """)
    a(M32(SA, KF[0], QA, vr(NMA, 16)))
    a(M32(SA, KF[0] + 4, QA + 4, vr(SA, 16)))
    a('s_nop 15')
    for r in range(16):
        a(f'v_exp_f32 v{SA+r}, v{SA+r}')
    a('s_nop 0')
    for r in range(8):
        a(f'v_cvt_pk_bf16_f32 v{PA+r}, v{SA+2*r}, v{SA+2*r+1}')
    a('s_nop 1')
    a(M32(OA, VF[0], PA, vr(OA, 16)))
    a(M32(OA, VF[0] + 4, PA + 4, vr(OA, 16)))
    a(SM(LA, PA))
    a(f"""
    s_add_u32 s40, s40, 4096
    s_cmp_lt_u32 s40, {64*4096}
    s_cbranch_scc1 {name}_s2
    s_nop 15
    v_add_f32 v{LA}, v{LA}, v{LA+1}
    s_branch {name}_fin
    """)
    a.label(f'{name}_end')
    a('s_endpgm')
    return a.text(), kernel_desc(name, 192), ATTN_LDS
```

```python
from asmlib import *
from k_qkv import WS_QF, WS_KV, WS_OF, WS_END

OUT_LDS = 128 * 1024

def gen_out(name='mha_out_kernel'):
    a = Asm()
    kernel_header(a, name)
    ACC = [32, 48]
    OFR = 64
    WB = [192, 200, 208, 216]
    a(f"""
    s_cmp_ge_u32 s2, 256
    s_cbranch_scc1 {name}_end
    s_load_dwordx2 s[4:5], s[0:1], 16
    s_load_dwordx2 s[6:7], s[0:1], 24
    s_load_dwordx2 s[8:9], s[0:1], 40
    v_lshrrev_b32 v1, 6, v0
    v_and_b32 v2, 63, v0
    s_and_b32 s27, s2, 7
    v_readfirstlane_b32 s24, v1
    s_lshr_b32 s28, s2, 3
    s_and_b32 s25, s27, 3
    s_lshl_b32 s25, s25, 2
    s_and_b32 s29, s28, 3
    s_add_u32 s25, s25, s29
    s_lshr_b32 s26, s27, 2
    s_lshl_b32 s26, s26, 3
    s_lshr_b32 s29, s28, 2
    s_add_u32 s26, s26, s29
    s_and_b32 s27, s24, 3
    s_lshr_b32 s28, s24, 2
    """)
    a.c('s25 = tb, s26 = cb, s27 = tt, s28 = kh')
    a(f"""
    v_lshrrev_b32 v5, 2, v2
    v_and_b32 v5, 7, v5
    v_lshrrev_b32 v6, 5, v2
    v_lshlrev_b32 v6, 6, v6
    v_and_b32 v7, 3, v2
    v_lshlrev_b32 v7, 4, v7
    v_add_u32 v6, v6, v7
    v_lshlrev_b32 v3, 11, v5
    v_add_u32 v3, v3, v6
    v_lshlrev_b32 v8, 4, v2
    s_waitcnt lgkmcnt(0)
    s_mov_b32 s12, s4
    s_mov_b32 s13, s5
    s_mov_b32 s14, {1024*1024*2}
    s_mov_b32 s15, 0x20000
    s_mov_b32 s16, s8
    s_mov_b32 s17, s9
    s_mov_b32 s18, {WS_END}
    s_mov_b32 s19, 0x20000
    s_mov_b32 s20, s6
    s_mov_b32 s21, s7
    s_mov_b32 s22, {2048*1024*2}
    s_mov_b32 s23, 0x20000
    """)
    a(f"""
    s_lshl_b32 s30, s28, 6
    s_lshl_b32 s29, s27, 2
    s_add_u32 s30, s30, s29
    s_lshl_b32 s31, s30, 10
    s_lshl_b32 s30, s30, 14
    s_lshl_b32 s29, s26, 7
    s_add_u32 s30, s30, s29
    s_lshl_b32 s33, s25, 2
    s_add_u32 s33, s33, s27
    s_lshl_b32 s33, s33, 5
    s_lshl_b32 s29, s28, 4
    s_add_u32 s33, s33, s29
    s_lshl_b32 s33, s33, 11
    s_add_u32 s33, s33, {WS_OF}
    """)
    a.c('s30 = Wo soffset of first image, s31 = its LDS offset, s33 = O frag offset')
    for c in range(4):
        for n in range(4):
            img = c * 16 + n
            a(f's_add_u32 m0, s31, {img*1024}')
            a(f's_add_u32 s34, s30, {img*16384}')
            a(f'buffer_load_dwordx4 v3, s[12:15], s34 offen lds')
        for hh in range(4):
            h = c * 4 + hh
            a(f's_add_u32 s34, s33, {h*2048}')
            a(f'buffer_load_dwordx4 {vr(OFR+8*h,4)}, v8, s[16:19], s34 offen')
            a(f'buffer_load_dwordx4 {vr(OFR+8*h+4,4)}, v8, s[16:19], s34 offen offset:1024')
    a(f"""
    v_lshrrev_b32 v4, 5, v2
    v_lshlrev_b32 v4, 8, v4
    v_and_b32 v6, 15, v2
    v_lshrrev_b32 v7, 2, v6
    v_lshlrev_b32 v7, 6, v7
    v_add_u32 v4, v4, v7
    v_and_b32 v7, 3, v6
    v_lshlrev_b32 v7, 3, v7
    v_add_u32 v4, v4, v7
    v_lshrrev_b32 v7, 4, v2
    v_and_b32 v7, 1, v7
    v_lshlrev_b32 v7, 5, v7
    v_add_u32 v4, v4, v7
    s_lshl_b32 s35, s28, 16
    v_add_u32 v9, s35, v4
    """)
    for r in range(32):
        a(f'v_mov_b32 v{ACC[0]+r}, 0')
    def wreads(step, b):
        base = (step >> 1) * 4096 + (step & 1) * 2048
        L = []
        for ch in range(2):
            L.append(f'ds_read_b64_tr_b16 {vr(b+4*ch,2)}, v9 offset:{base+ch*512}')
            L.append(f'ds_read_b64_tr_b16 {vr(b+4*ch+2,2)}, v9 offset:{base+ch*512+1024}')
        return L
    for c in range(4):
        a(f's_waitcnt vmcnt({12*(3-c)})')
        a('s_barrier')
        steps = list(range(c * 8, c * 8 + 8))
        for l in wreads(steps[0], WB[0]): a(l)
        for l in wreads(steps[1], WB[1]): a(l)
        for i, st in enumerate(steps):
            if i + 2 < 8:
                for l in wreads(steps[i + 2], WB[(i + 2) % 4]): a(l)
                a('s_waitcnt lgkmcnt(8)')
            elif i + 1 < 8:
                a('s_waitcnt lgkmcnt(4)')
            else:
                a('s_waitcnt lgkmcnt(0)')
            b = WB[i % 4]
            of = OFR + 4 * st
            for ch in range(2):
                a(f'v_mfma_f32_32x32x16_bf16 {vr(ACC[ch],16)}, {vr(b+4*ch,4)}, {vr(of,4)}, {vr(ACC[ch],16)}')
    PITCH = 272
    a('s_barrier')
    a(f"""
    v_and_b32 v4, 31, v2
    s_lshl_b32 s35, s27, 5
    v_add_u32 v4, s35, v4
    v_mul_u32_u24 v4, {PITCH}, v4
    v_lshrrev_b32 v5, 5, v2
    v_lshlrev_b32 v5, 4, v5
    v_add_u32 v4, v4, v5
    s_mul_i32 s35, s28, {128*PITCH}
    v_add_u32 v4, s35, v4
    s_nop 7
    """)
    for ch in range(2):
        for q in range(4):
            a(f'ds_write_b128 v4, {vr(ACC[ch]+4*q,4)} offset:{ch*128+q*32}')
    a('s_waitcnt lgkmcnt(0)')
    a('s_barrier')
    a(f"""
    v_lshrrev_b32 v4, 3, v0
    v_and_b32 v5, 7, v0
    v_mul_u32_u24 v6, {PITCH}, v4
    v_lshlrev_b32 v7, 5, v5
    v_add_u32 v6, v6, v7
    s_lshl_b32 s35, s25, 7
    v_add_u32 v4, s35, v4
    v_lshlrev_b32 v4, 11, v4
    v_lshlrev_b32 v5, 4, v5
    v_add_u32 v4, v4, v5
    s_lshl_b32 s36, s26, 7
    s_add_u32 s37, s36, {64*2048}
    """)
    for rr in range(2):
        o = rr * 64 * PITCH
        b = 64 + rr * 16
        a(f'ds_read_b128 {vr(b,4)}, v6 offset:{o}')
        a(f'ds_read_b128 {vr(b+4,4)}, v6 offset:{o+16}')
        a(f'ds_read_b128 {vr(b+8,4)}, v6 offset:{o+128*PITCH}')
        a(f'ds_read_b128 {vr(b+12,4)}, v6 offset:{o+128*PITCH+16}')
    a('s_waitcnt lgkmcnt(0)')
    for rr in range(2):
        b = 64 + rr * 16
        for r in range(8):
            a(f'v_add_f32 v{b+r}, v{b+r}, v{b+8+r}')
        for r in range(4):
            a(f'v_cvt_pk_bf16_f32 v{96+4*rr+r}, v{b+2*r}, v{b+2*r+1}')
        a(f'buffer_store_dwordx4 {vr(96+4*rr,4)}, v4, s[20:23], s{36+rr} offen')
    a('s_waitcnt vmcnt(0)')
    a.label(f'{name}_end')
    a('s_endpgm')
    return a.text(), kernel_desc(name, 224), OUT_LDS
```

```python
from asmlib import *
import math

WS_QF = 0
WS_KV = 4 << 20
WS_OF = 12 << 20
WS_END = 16 << 20
QSCALE = math.log2(math.e) / math.sqrt(32.0)

XIMG = 1040
XBYTES = 16 * XIMG
WBYTES = 24 * 1024
SLOT = XBYTES + WBYTES
NSLOT = 3
QKV_LDS = SLOT * NSLOT

def gen_qkv(name='mha_qkv_kernel'):
    a = Asm()
    kernel_header(a, name)
    a(f"""
    s_cmp_ge_u32 s2, 256
    s_cbranch_scc1 {name}_end
    s_load_dwordx2 s[4:5], s[0:1], 0
    s_load_dwordx2 s[6:7], s[0:1], 8
    s_load_dwordx2 s[8:9], s[0:1], 40
    v_lshrrev_b32 v1, 6, v0
    v_and_b32 v2, 63, v0
    s_and_b32 s27, s2, 7
    v_readfirstlane_b32 s24, v1
    s_lshr_b32 s28, s2, 3
    s_and_b32 s25, s27, 3
    s_lshl_b32 s25, s25, 2
    s_and_b32 s29, s28, 3
    s_add_u32 s25, s25, s29
    s_lshr_b32 s26, s27, 2
    s_lshl_b32 s26, s26, 3
    s_lshr_b32 s29, s28, 2
    s_add_u32 s26, s26, s29
    """)
    a.c('s24 = wave, s25 = pair p, s26 = token block t')
    a(f"""
    s_cmp_ge_u32 s24, 4
    s_cbranch_scc0 {name}_consumer
    """)
    a.c('---- producer ----')
    a(f"""
    s_sub_u32 s24, s24, 4
    v_lshrrev_b32 v5, 2, v2
    v_and_b32 v5, 7, v5
    v_lshrrev_b32 v6, 5, v2
    v_lshlrev_b32 v6, 6, v6
    v_and_b32 v7, 3, v2
    v_lshlrev_b32 v7, 4, v7
    v_add_u32 v6, v6, v7
    v_lshlrev_b32 v3, 11, v5
    v_add_u32 v3, v3, v6
    v_mul_u32_u24 v4, 6144, v5
    v_add_u32 v4, v4, v6
    s_lshl_b32 s30, s26, 2
    s_add_u32 s30, s30, s24
    s_lshl_b32 s30, s30, 16
    s_mul_i32 s29, s24, 6
    s_lshl_b32 s28, s25, 7
    """)
    a.c('s30 = x soffset: (t*128 + 32*pw)*2048 ; s31..s36 = w soffsets')
    for n in range(6):
        a(f"""
        s_add_u32 s41, s29, {n}
        s_lshr_b32 s42, s41, 3
        s_lshl_b32 s42, s42, 11
        s_and_b32 s41, s41, 7
        s_mul_i32 s41, s41, 49152
        s_add_u32 s41, s41, s42
        s_add_u32 s{31+n}, s41, s28
        """)
    a(f"""
    s_mul_i32 s37, s24, {4*XIMG}
    s_mul_i32 s38, s24, {6*1024}
    s_add_u32 s38, s38, {XBYTES}
    s_mov_b32 s39, 0
    s_mov_b32 s40, 0
    s_waitcnt lgkmcnt(0)
    s_mov_b32 s12, s4
    s_mov_b32 s13, s5
    s_mov_b32 s14, {2048*1024*2}
    s_mov_b32 s15, 0x20000
    s_mov_b32 s16, s6
    s_mov_b32 s17, s7
    s_mov_b32 s18, {1024*3072*2}
    s_mov_b32 s19, 0x20000
    """)
    a.label(f'{name}_ploop')
    a('s_add_u32 s43, s37, s39')
    a('s_add_u32 s44, s38, s39')
    for n in range(4):
        a(f"""
        s_add_u32 m0, s43, {n*XIMG}
        s_add_u32 s41, s30, {n*16384}
        buffer_load_dwordx4 v3, s[12:15], s41 offen lds
        """)
    for n in range(6):
        a(f"""
        s_add_u32 m0, s44, {n*1024}
        s_add_u32 s{31+n}, s{31+n}, 0
        buffer_load_dwordx4 v4, s[16:19], s{31+n} offen lds
        """)
    for n in range(6):
        a(f's_add_u32 s{31+n}, s{31+n}, {64*6144}')
    a(f"""
    s_add_u32 s30, s30, 128
    s_add_u32 s39, s39, {SLOT}
    s_cmp_eq_u32 s39, {SLOT*NSLOT}
    s_cselect_b32 s39, 0, s39
    s_add_u32 s40, s40, 1
    s_cmp_lt_u32 s40, 3
    s_cbranch_scc1 {name}_ploop
    s_cmp_eq_u32 s40, 3
    s_cbranch_scc0 {name}_pnorm
    s_waitcnt vmcnt(20)
    s_barrier
    """)
    a.label(f'{name}_pnorm')
    a(f"""
    s_waitcnt vmcnt(10)
    s_barrier
    s_cmp_lt_u32 s40, 16
    s_cbranch_scc1 {name}_ploop
    s_waitcnt vmcnt(0)
    s_barrier
    s_barrier
    s_endpgm
    """)
    a.label(f'{name}_consumer')
    ACC = 32
    Q = [32, 48]; K = [64, 80]; V = [96, 112]
    BUF = [128, 148]
    VX, VW, VX0, VW0 = 8, 9, 10, 11
    a.c('i = wave>>1 (token half), j = wave&1 (head in pair)')
    a(f"""
    s_lshr_b32 s30, s24, 1
    s_and_b32 s31, s24, 1
    v_and_b32 v3, 31, v2
    v_lshrrev_b32 v4, 5, v2
    v_lshrrev_b32 v5, 3, v3
    v_mul_u32_u24 v5, {XIMG}, v5
    v_and_b32 v6, 7, v3
    v_lshlrev_b32 v6, 6, v6
    v_add_u32 v5, v5, v6
    v_lshlrev_b32 v6, 4, v4
    v_add_u32 v5, v5, v6
    s_mul_i32 s32, s30, {8*XIMG}
    v_add_u32 v{VX0}, s32, v5
    v_lshlrev_b32 v5, 10, v4
    v_and_b32 v6, 15, v2
    v_lshrrev_b32 v7, 2, v6
    v_lshlrev_b32 v7, 6, v7
    v_add_u32 v5, v5, v7
    v_and_b32 v7, 3, v6
    v_lshlrev_b32 v7, 3, v7
    v_add_u32 v5, v5, v7
    v_lshrrev_b32 v7, 4, v2
    v_and_b32 v7, 1, v7
    v_lshlrev_b32 v7, 5, v7
    v_add_u32 v5, v5, v7
    s_lshl_b32 s32, s31, 9
    s_add_u32 s32, s32, {XBYTES}
    v_add_u32 v{VW0}, s32, v5
    v_lshlrev_b32 v12, 4, v2
    """)
    for r in range(ACC, ACC + 96):
        a(f'v_mov_b32 v{r}, 0')
    def reads(step, b):
        xo = (step >> 1) * 512 + (step & 1) * 32
        L = []
        L.append(f'ds_read_b64_tr_b16 {vr(b+8,2)}, v{VW} offset:{step*2048}')
        L.append(f'ds_read_b64_tr_b16 {vr(b+10,2)}, v{VW} offset:{step*2048+256}')
        L.append(f'ds_read_b128 {vr(b,4)}, v{VX} offset:{xo}')
        L.append(f'ds_read_b128 {vr(b+4,4)}, v{VX} offset:{xo+4*XIMG}')
        for g in (1, 2):
            L.append(f'ds_read_b64_tr_b16 {vr(b+8+4*g,2)}, v{VW} offset:{g*8192+step*2048}')
            L.append(f'ds_read_b64_tr_b16 {vr(b+10+4*g,2)}, v{VW} offset:{g*8192+step*2048+256}')
        return L
    def mfmas(b):
        x0, x1 = vr(b, 4), vr(b + 4, 4)
        wq, wk, wv = vr(b + 8, 4), vr(b + 12, 4), vr(b + 16, 4)
        M = lambda d, A, B: f'v_mfma_f32_32x32x16_bf16 {vr(d,16)}, {A}, {B}, {vr(d,16)}'
        return [M(Q[0], wq, x0), M(Q[1], wq, x1), M(K[0], wk, x0), M(K[1], wk, x1), M(V[0], x0, wv), M(V[1], x1, wv)]
    a(f"""
    s_mov_b32 s39, 0
    s_mov_b32 s40, 0
    v_mov_b32 v{VX}, v{VX0}
    v_mov_b32 v{VW}, v{VW0}
    s_barrier
    """)
    for l in reads(0, BUF[0]): a(l)
    a.raw('.p2align 6')
    a.label(f'{name}_cloop')
    for step in range(4):
        cur, nxt = BUF[step & 1], BUF[(step + 1) & 1]
        m = mfmas(cur)
        a('s_waitcnt lgkmcnt(0)')
        if step < 3:
            r = reads(step + 1, nxt)
            seq = interleave(m, r, [1, 1, 2, 2, 3, 3, 4, 4])
        else:
            a(f"""
            s_add_u32 s39, s39, {SLOT}
            s_cmp_eq_u32 s39, {SLOT*NSLOT}
            s_cselect_b32 s39, 0, s39
            v_add_u32 v{VX}, s39, v{VX0}
            v_add_u32 v{VW}, s39, v{VW0}
            """)
            r = ['s_barrier'] + reads(0, nxt)
            seq = interleave(m, r, [1, 1, 1, 2, 2, 3, 3, 4, 4])
        for l in seq: a(l)
    a(f"""
    s_add_u32 s40, s40, 1
    s_cmp_lt_u32 s40, 16
    s_cbranch_scc1 {name}_cloop
    """)
    a.c('---- epilogue ----')
    a(f"""
    s_waitcnt lgkmcnt(0)
    s_mov_b32 s20, s8
    s_mov_b32 s21, s9
    s_mov_b32 s22, {WS_END}
    s_mov_b32 s23, 0x20000
    s_lshl_b32 s33, s25, 1
    s_add_u32 s33, s33, s31
    s_lshl_b32 s33, s33, 6
    s_lshl_b32 s34, s26, 2
    s_add_u32 s33, s33, s34
    s_lshl_b32 s34, s30, 1
    s_add_u32 s33, s33, s34
    s_lshl_b32 s35, s33, 11
    s_lshl_b32 s36, s33, 12
    s_add_u32 s36, s36, {WS_KV}
    s_mov_b32 s37, {f32hex(QSCALE)}
    s_nop 7
    """)
    a.c('s33 = h*64 + tile ; s35 = Q offset ; s36 = KV offset')
    def pack_store(src, dst, soff, imm):
        for r in range(8):
            a(f'v_cvt_pk_bf16_f32 v{dst+r}, v{src+2*r}, v{src+2*r+1}')
        a(f'buffer_store_dwordx4 {vr(dst,4)}, v12, s[20:23], s{soff} offen offset:{imm}')
        a(f'buffer_store_dwordx4 {vr(dst+4,4)}, v12, s[20:23], s{soff} offen offset:{imm+1024}')
    a(f's_add_u32 s38, s36, 4096')
    a(f's_add_u32 s39, s35, 2048')
    pack_store(K[0], 128, 36, 0)
    pack_store(V[0], 136, 36, 2048)
    pack_store(K[1], 144, 38, 0)
    pack_store(V[1], 152, 38, 2048)
    for r in range(32):
        a(f'v_mul_f32 v{Q[0]+r}, s37, v{Q[0]+r}')
    pack_store(Q[0], 160, 35, 0)
    pack_store(Q[1], 168, 39, 0)
    a('s_waitcnt vmcnt(0)')
    a.label(f'{name}_end')
    a('s_endpgm')
    return a.text(), kernel_desc(name, 176), QKV_LDS
```

```python
import sys
from asmlib import *
from k_qkv import gen_qkv
from k_attn import gen_attn
from k_out import gen_out

def main(path):
    parts = [gen_qkv(), gen_attn(), gen_out()]
    names = ['mha_qkv_kernel', 'mha_attn_kernel', 'mha_out_kernel']
    hdr = '; MHA block: QKV GEMM -> attention -> out projection (generated by a hand-written python generator)\n'
    for n, p in zip(names, parts):
        hdr += f'; @launch kernel={n} grid=(256,1,1) block=(512,1,1) lds={p[2]}\n'
    s = hdr + '.amdgcn_target "amdgcn-amd-amdhsa--gfx950"\n.text\n'
    for p in parts:
        s += p[0]
    s += '.section .rodata,"a"\n'
    for p in parts:
        s += '.p2align 6\n' + p[1]
    open(path, 'w').write(s)

if __name__ == '__main__':
    main(sys.argv[1] if len(sys.argv) > 1 else 'standalone__mha_block__prompt.s')
```
